```python
import torch

def _softmax(x, axis=-1):
    return torch.softmax(x, dim=axis)
def _gelu(x):
    return torch.nn.functional.gelu(x, approximate="tanh")
def _silu(x):
    return torch.nn.functional.silu(x)
def _sigmoid(x):
    return torch.sigmoid(x)
def _layernorm(x, axis=-1, eps=1e-5):
    m = x.mean(dim=axis, keepdim=True)
    v = x.var(dim=axis, keepdim=True, unbiased=False)
    return (x - m) / torch.sqrt(v + eps)
def _scatter_add(tgt, idx, src, axis=0):
    return tgt.clone().index_add_(axis, idx, src)
def _segment_sum(src, seg, n):
    out = torch.zeros((n,) + src.shape[1:], dtype=src.dtype)
    return out.index_add_(0, seg, src)
def _pad(x, pw):
    flat = tuple(v for pair in reversed(pw) for v in pair)
    return torch.nn.functional.pad(x, flat)

kernel_name = 'standalone__mha_softmax__near_ridge'

def setup_inputs():

    _w = (lambda a: (lambda t: t.to(torch.bfloat16) if t.is_floating_point() else t)(torch.as_tensor(a)))
    B, H, Sq, Sk, D = 16, 32, 256, 256, 128
    return {
        "q": _w((lambda *s: torch.randn(*s, dtype=torch.bfloat16) * 0.8)(B, H, Sq, D)),
        "k": _w((lambda *s: torch.randn(*s, dtype=torch.bfloat16) * 0.8)(B, H, Sk, D)),
        "v": _w((lambda *s: torch.randn(*s, dtype=torch.bfloat16) * 0.05)(B, H, Sk, D)),
    }

def reference(q, k, v):
    scale = q.shape[-1] ** -0.5
    scores = torch.einsum("bhqd,bhkd->bhqk", q, k) * scale
    p = _softmax(scores, axis=-1)
    return torch.einsum("bhqk,bhkd->bhqd", p, v)
```

```python
import re

TRANS = ("v_exp_f32", "v_log_f32", "v_rcp_f32", "v_rsq_f32", "v_sqrt_f32", "v_sin_f32", "v_cos_f32")


def parse_regs(tok):
    tok = tok.strip()
    tok = tok.lstrip("-")
    m = re.fullmatch(r"abs\((.*)\)", tok)
    if m:
        tok = m.group(1)
    m = re.fullmatch(r"([vsa])\[(\d+):(\d+)\]", tok)
    if m:
        return [(m.group(1), i) for i in range(int(m.group(2)), int(m.group(3)) + 1)]
    m = re.fullmatch(r"([vsa])(\d+)", tok)
    if m:
        return [(m.group(1), int(m.group(2)))]
    if tok in ("m0", "vcc", "exec", "scc"):
        return [(tok, 0)]
    return []


class Ins:
    def __init__(self, text):
        self.text = text
        t = text.split(";")[0].strip()
        self.label = t.endswith(":")
        parts = t.split(None, 1)
        self.op = parts[0] if parts else ""
        rest = parts[1] if len(parts) > 1 else ""
        ops = [o.strip() for o in rest.split(",")] if rest else []
        self.mods = ""
        if ops:
            last = ops[-1].split(None, 1)
            ops[-1] = last[0]
            self.mods = last[1] if len(last) > 1 else ""
        self.ops = ops
        self.classify()

    def classify(self):
        op = self.op
        self.kind = "other"
        self.w = []
        self.r = []
        self.srcc = []
        self.srcab = []
        o = self.ops
        R = parse_regs
        if self.label or op == "":
            self.kind = "label"
            return
        if op == "v_nop":
            self.kind = "other"
        elif op.startswith("v_mfma"):
            self.kind = "mfma"
            self.w = R(o[0])
            self.srcab = R(o[1]) + R(o[2])
            self.srcc = R(o[3])
            self.r = self.srcab + self.srcc
            self.passes = 8 if "32x32x16" in op else 4
        elif op.startswith("v_permlane"):
            self.kind = "valu"
            self.sub = "permlane"
            self.w = R(o[0]) + R(o[1])
            self.r = R(o[0]) + R(o[1])
        elif op.startswith("v_readfirstlane") or op.startswith("v_readlane"):
            self.kind = "valu"
            self.sub = "readlane"
            self.w = R(o[0])
            self.r = sum((R(x) for x in o[1:]), [])
        elif op.startswith("v_cmp"):
            self.kind = "valu"
            self.sub = "cmp"
            self.w = R(o[0])
            self.r = sum((R(x) for x in o[1:]), [])
        elif op.startswith("v_"):
            self.kind = "valu"
            self.sub = "trans" if any(op.startswith(t) for t in TRANS) else "plain"
            self.w = R(o[0])
            self.r = sum((R(x) for x in o[1:]), [])
            if op.startswith("v_fmac") or op.startswith("v_dot2c"):
                self.r += self.w
            if "dpp" in op or "quad_perm" in self.mods or "row_" in self.mods:
                self.sub = "dpp"
        elif op.startswith("ds_read"):
            self.kind = "ds"
            self.w = R(o[0])
            self.r = R(o[1])
        elif op.startswith("ds_write"):
            self.kind = "ds"
            self.r = sum((R(x) for x in o), [])
        elif op.startswith("buffer_load"):
            self.kind = "vmem"
            if " lds" in (" " + self.mods):
                self.lds = True
                self.r = sum((R(x) for x in o), []) + [("m0", 0)]
            else:
                self.lds = False
                self.w = R(o[0])
                self.r = sum((R(x) for x in o[1:]), [])
        elif op.startswith("buffer_store"):
            self.kind = "vmem"
            self.lds = False
            self.store_data = R(o[0])
            self.wide = op.endswith("x4") or op.endswith("x3")
            self.r = sum((R(x) for x in o), [])
        elif op.startswith("global_load"):
            self.kind = "vmem"
            self.lds = False
            self.w = R(o[0])
            self.r = sum((R(x) for x in o[1:]), [])
        elif op.startswith("s_nop"):
            self.kind = "nop"
            self.n = int(o[0], 0) + 1
        elif op.startswith("s_"):
            self.kind = "salu"
            if op.startswith(("s_waitcnt", "s_barrier", "s_endpgm", "s_branch", "s_cbranch", "s_setprio", "s_sleep", "s_cmp")):
                self.r = sum((R(x) for x in o), []) if op.startswith("s_cmp") else []
            else:
                self.w = R(o[0])
                self.r = sum((R(x) for x in o[1:]), [])


class Asm:
    def __init__(self):
        self.ins = []

    def e(self, text):
        for line in text.strip().split("\n"):
            line = line.strip()
            if line:
                self.ins.append(Ins(line))

    def finalize(self, pad=True):
        out = []
        pos = 0
        valu_w = {}
        trans_w = {}
        mfma_w = {}
        mfma_c = {}
        valu_sw = {}
        m0_w = -100
        store_d = {}
        npad = 0
        for I in self.ins:
            if I.kind == "label":
                out.append(I.text)
                continue
            need = 0

            def req(p, ws):
                nonlocal need
                need = max(need, p + ws + 1)

            xd = {2: 5, 4: 8, 8: 12, 16: 20}
            xo = {2: 4, 4: 6, 8: 10, 16: 18}
            xw = {2: 1, 4: 3, 8: 7, 16: 15}
            if I.kind == "mfma":
                for r in I.r:
                    if r in valu_w:
                        req(valu_w[r], 2)
                for r in I.srcab:
                    if r in mfma_w:
                        req(mfma_w[r][0], xd[mfma_w[r][1]])
                for r in I.srcc:
                    if r in mfma_w:
                        p, ps, D = mfma_w[r]
                        if D == tuple(I.srcc) and ps == I.passes:
                            pass
                        else:
                            req(p, xo[ps])
                for r in I.w:
                    if r in mfma_w and r not in I.srcc:
                        p, ps, D = mfma_w[r]
                        req(p, xo[ps])
            elif I.kind == "valu":
                for r in I.r + I.w:
                    if r in mfma_w:
                        req(mfma_w[r][0], xd[mfma_w[r][1]])
                for r in I.w:
                    if r in mfma_c:
                        req(mfma_c[r][0], xw[mfma_c[r][1]])
                    if r in store_d:
                        req(store_d[r], 2)
                if I.sub != "trans":
                    for r in I.r:
                        if r in trans_w:
                            req(trans_w[r], 1)
                if I.sub in ("permlane", "dpp"):
                    for r in I.r:
                        if r in valu_w:
                            req(valu_w[r], 2)
                if I.sub == "readlane":
                    for r in I.r:
                        if r in valu_w:
                            req(valu_w[r], 1)
                for r in I.r:
                    if r in valu_sw:
                        req(valu_sw[r], 2)
            elif I.kind in ("ds", "vmem"):
                for r in I.r + I.w:
                    if r in mfma_w:
                        req(mfma_w[r][0], xd[mfma_w[r][1]])
                for r in I.w:
                    if r in store_d:
                        req(store_d[r], 1)
                    if r in mfma_c:
                        req(mfma_c[r][0], xw[mfma_c[r][1]])
                for r in I.r:
                    if r in trans_w:
                        req(trans_w[r], 1)
                if I.kind == "vmem":
                    for r in I.r:
                        if r in valu_sw:
                            req(valu_sw[r], 5)
                    if getattr(I, "lds", False):
                        req(m0_w, 1)
            elif I.kind == "salu":
                for r in I.r:
                    if r in valu_sw:
                        req(valu_sw[r], 4)
            if need > pos:
                k = need - pos
                if not pad:
                    raise RuntimeError("hazard at %s needs %d" % (I.text, k))
                npad += k
                while k > 0:
                    n = min(k, 16)
                    out.append("s_nop %d" % (n - 1))
                    pos += n
                    k -= n
            out.append(I.text)
            if I.kind == "nop":
                pos += I.n
                continue
            if I.kind == "mfma":
                for r in I.w:
                    mfma_w[r] = (pos, I.passes, tuple(I.w))
                    valu_w.pop(r, None)
                    trans_w.pop(r, None)
                for r in I.srcc:
                    mfma_c[r] = (pos, I.passes)
            elif I.kind == "valu":
                for r in I.w:
                    if r[0] in ("s", "vcc"):
                        valu_sw[r] = pos
                    else:
                        valu_w[r] = pos
                        mfma_w.pop(r, None)
                        if I.sub == "trans":
                            trans_w[r] = pos
                        else:
                            trans_w.pop(r, None)
            elif I.kind in ("ds", "vmem"):
                for r in I.w:
                    valu_w.pop(r, None)
                    trans_w.pop(r, None)
                    mfma_w.pop(r, None)
                if getattr(I, "wide", False):
                    for r in I.store_data:
                        store_d[r] = pos
            elif I.kind == "salu":
                for r in I.w:
                    if r == ("m0", 0):
                        m0_w = pos
                    valu_sw.pop(r, None)
            pos += 1
        self.npad = npad
        return out
```

```python
import sys, math, struct
from asmlib import Asm

NAME = "standalone__mha_softmax__near_ridge"

class Cfg:
    ld_mod = ""
    dma_mod = ""
    st_mod = ""
    head_map = "split"

def f32bits(x):
    return struct.unpack("<I", struct.pack("<f", x))[0]

KP = 1040
VP = 1088
KBASE = 0
VBASE = 64 * KP
LDS_BYTES = VBASE + 64 * VP

vQO = 1
vDMA = 2
vKA = 3
vVA = 4
vM0, vM1, vMC, vL0, vL1, vT0, vT1 = 5, 6, 7, 8, 9, 10, 11
vF = 16
vQ = 32
vO = 64
vS = 128
sQ, sK, sV, sO = 12, 16, 20, 24
sW = 28
sHB = 29
sC = 30
sNC = 31
sKM = 32
sVM = 33
sT = 34
sHA, sHBB = 35, 36


def vr(base, n):
    return "v[%d:%d]" % (base, base + n - 1)


def sr(base, n):
    return "s[%d:%d]" % (base, base + n - 1)


class Gen:
    def __init__(self, cfg):
        self.cfg = cfg
        self.a = Asm()
        self.vm = []

    def e(self, t):
        self.a.e(t)

    def vm_issue(self, tag):
        self.vm.append(tag)

    def vm_wait(self, pred):
        last = -1
        for i, t in enumerate(self.vm):
            if pred(t):
                last = i
        if last < 0:
            return
        n = len(self.vm) - 1 - last
        assert n <= 63
        self.e("s_waitcnt vmcnt(%d)" % n)
        self.vm = self.vm[last + 1:]

    def load_q(self, sh, h):
        for s in range(8):
            self.e("buffer_load_dwordx4 %s, v%d, %s, s%d offen offset:%d %s" % (
                vr(vQ + 4 * s, 4), vQO, sr(sQ, 4), sh, 32 * s, self.cfg.ld_mod))
            self.vm_issue(("Q", h))

    def dma(self, which, sh, h):
        srd, sm, P = (sK, sKM, KP) if which == "K" else (sV, sVM, VP)
        for G in range(4):
            for i in range(2):
                self.e("s_add_u32 m0, s%d, %d" % (sm, (16 * G + i) * P))
                self.e("s_add_u32 s%d, s%d, %d" % (sT, sh, (16 * G + i) * 1024))
                self.e("buffer_load_dwordx4 v%d, %s, s%d offen %s lds" % (vDMA, sr(srd, 4), sT, self.cfg.dma_mod))
                self.vm_issue((which, h, G))

    def prologue(self):
        c = math.log2(math.e) / math.sqrt(128.0)
        e = self.e
        e("s_cmp_ge_u32 s2, 256")
        e("s_cbranch_scc1 L_end")
        e("s_load_dwordx8 s[4:11], s[0:1], 0")
        e("v_lshrrev_b32 v12, 6, v0")
        e("v_and_b32 v13, 63, v0")
        e("v_readfirstlane_b32 s%d, v12" % sW)
        e("v_and_b32 v14, 31, v13")
        e("v_lshrrev_b32 v15, 5, v13")
        e("v_lshlrev_b32 v%d, 13, v12" % vQO)
        e("v_lshl_add_u32 v%d, v14, 8, v%d" % (vQO, vQO))
        e("v_lshl_add_u32 v%d, v15, 4, v%d" % (vQO, vQO))
        e("v_lshlrev_b32 v%d, 11, v12" % vDMA)
        e("v_lshl_add_u32 v%d, v13, 4, v%d" % (vDMA, vDMA))
        if self.cfg.head_map == "split":
            e("s_lshl_b32 s%d, s2, 16" % sHA)
            e("s_add_u32 s%d, s%d, %d" % (sHBB, sHA, 256 * 65536))
        else:
            e("s_lshl_b32 s%d, s2, 17" % sHA)
            e("s_add_u32 s%d, s%d, %d" % (sHBB, sHA, 65536))
        e("s_mul_i32 s%d, s%d, %d" % (sKM, sW, 2 * KP))
        e("s_mul_i32 s%d, s%d, %d" % (sVM, sW, 2 * VP))
        e("s_add_u32 s%d, s%d, %d" % (sVM, sVM, VBASE))
        if KBASE:
            e("s_add_u32 s%d, s%d, %d" % (sKM, sKM, KBASE))
        e("s_waitcnt lgkmcnt(0)")
        for srd, p in ((sQ, 4), (sK, 6), (sV, 8), (sO, 10)):
            e("s_mov_b32 s%d, s%d" % (srd, p))
            e("s_and_b32 s%d, s%d, 0xffff" % (srd + 1, p + 1))
            e("s_mov_b32 s%d, 0x2000000" % (srd + 2))
            e("s_mov_b32 s%d, 0x20000" % (srd + 3))
        self.load_q(sHA, 0)
        self.dma("K", sHA, 0)
        self.dma("V", sHA, 0)
        e("v_and_b32 v%d, 15, v13" % vT0)
        e("v_mul_u32_u24 v%d, %d, v%d" % (vKA, KP, vT0))
        e("v_bfe_u32 v%d, v13, 4, 1" % vT0)
        e("v_lshl_add_u32 v%d, v%d, 8, v%d" % (vKA, vT0, vKA))
        e("v_lshl_add_u32 v%d, v15, 4, v%d" % (vKA, vKA))
        if KBASE:
            e("v_add_u32 v%d, %d, v%d" % (vKA, KBASE, vKA))
        e("v_bfe_u32 v%d, v13, 2, 2" % vT1)
        e("v_lshl_add_u32 v%d, v15, 2, v%d" % (vT1, vT1))
        e("v_mul_u32_u24 v%d, %d, v%d" % (vVA, VP, vT1))
        e("v_lshl_add_u32 v%d, v%d, 5, v%d" % (vVA, vT0, vVA))
        e("v_and_b32 v%d, 1, v13" % vT0)
        e("v_lshl_add_u32 v%d, v%d, 4, v%d" % (vVA, vT0, vVA))
        e("v_bfe_u32 v%d, v13, 1, 1" % vT0)
        e("v_lshl_add_u32 v%d, v%d, 3, v%d" % (vVA, vT0, vVA))
        e("v_add_u32 v%d, %d, v%d" % (vVA, VBASE, vVA))
        e("s_mov_b32 s%d, 0x%08x" % (sC, f32bits(c)))
        e("s_mov_b32 s%d, 0x%08x" % (sNC, f32bits(-c)))

    def max_ops(self, T):
        ops = []
        b = vS + 16 * T
        if T == 0:
            ops.append("v_max_f32 v%d, v%d, v%d" % (vM0, b, b + 1))
            ops.append("v_max_f32 v%d, v%d, v%d" % (vM1, b + 2, b + 3))
            rng = range(2, 8)
        else:
            rng = range(8)
        for i in rng:
            m = vM0 if i % 2 == 0 else vM1
            ops.append("v_max3_f32 v%d, v%d, v%d, v%d" % (m, b + 2 * i, b + 2 * i + 1, m))
        return ops

    def exp_ops(self, T):
        ops = []
        b = vS + 16 * T

        def fin(i):
            ops.append("v_add_f32 v%d, v%d, v%d" % (vL0, vL0, b + 2 * i))
            ops.append("v_add_f32 v%d, v%d, v%d" % (vL1, vL1, b + 2 * i + 1))
            ops.append("v_cvt_pk_bf16_f32 v%d, v%d, v%d" % (b + i, b + 2 * i, b + 2 * i + 1))
        for i in range(8):
            for r in (2 * i, 2 * i + 1):
                ops.append("v_fma_f32 v%d, v%d, s%d, v%d" % (b + r, b + r, sC, vMC))
            for r in (2 * i, 2 * i + 1):
                ops.append("v_exp_f32 v%d, v%d" % (b + r, b + r))
            if i > 0:
                fin(i - 1)
        fin(7)
        return ops

    def qk(self, h):
        e = self.e
        kf = lambda k: vO + 4 * (k % 8)
        pend = []
        for G in range(4):
            self.vm_wait(lambda t: t == ("Q", h) or (t[0] == "K" and t[1] == h and t[2] <= G))
            e("s_barrier")

            def rd(k):
                a, s = divmod(k, 8)
                e("ds_read_b128 %s, v%d offset:%d" % (vr(kf(k), 4), vKA, G * 16 * KP + a * 512 + s * 32))
            for k in range(8):
                rd(k)
            issued = 8
            for k in range(16):
                a, s = divmod(k, 8)
                T = 2 * G + a
                e("s_waitcnt lgkmcnt(%d)" % (issued - (k + 1)))
                D = vr(vS + 16 * T, 16)
                e("v_mfma_f32_32x32x16_bf16 %s, %s, %s, %s" % (D, vr(kf(k), 4), vr(vQ + 4 * s, 4), "0" if s == 0 else D))
                if issued < 16:
                    rd(issued)
                    issued += 1
                if s == 3 and T > 0:
                    pend = self.max_ops(T - 1)
                if s >= 4 and pend:
                    e(pend.pop(0))
                    e(pend.pop(0))
            assert not pend
        for op in self.max_ops(7):
            e(op)

    def softmax_head(self):
        e = self.e
        e("v_max_f32 v%d, v%d, v%d" % (vM0, vM0, vM1))
        e("v_mov_b32 v%d, v%d" % (vM1, vM0))
        e("v_mov_b32 v%d, 0" % vL0)
        e("v_mov_b32 v%d, 0" % vL1)
        e("v_permlane32_swap_b32 v%d, v%d" % (vM0, vM1))
        e("v_max_f32 v%d, v%d, v%d" % (vM0, vM0, vM1))
        e("v_mul_f32 v%d, s%d, v%d" % (vMC, sNC, vM0))

    def pv(self, h):
        e = self.e
        slots = [vF, vF + 4, vF + 8, vF + 12, vS + 8, vS + 12, vS + 24, vS + 28]
        for op in self.exp_ops(0) + self.exp_ops(1):
            e(op)
        for G in range(4):
            self.vm_wait(lambda t: t[0] == "V" and t[1] == h and t[2] <= G)
            e("s_barrier")
            if G < 3:
                fill = self.exp_ops(2 * G + 2) + self.exp_ops(2 * G + 3)
            else:
                fill = ["v_add_f32 v%d, v%d, v%d" % (vL0, vL0, vL1),
                        "v_mov_b32 v%d, v%d" % (vL1, vL0),
                        "v_permlane32_swap_b32 v%d, v%d" % (vL0, vL1),
                        "v_add_f32 v%d, v%d, v%d" % (vL0, vL0, vL1),
                        "v_rcp_f32 v%d, v%d" % (vL0, vL0)]
            per = (len(fill) + 15) // 16

            def rd(k):
                aj, t = divmod(k, 4)
                for u in range(2):
                    off = (16 * G + 8 * u) * VP + aj * 256 + 64 * t
                    e("ds_read_b64_tr_b16 %s, v%d offset:%d" % (vr(slots[k % 8] + 2 * u, 2), vVA, off))
            LA = 7
            for k in range(LA):
                rd(k)
            issued = LA
            for k in range(16):
                aj, t = divmod(k, 4)
                a, j = divmod(aj, 2)
                T = 2 * G + a
                e("s_waitcnt lgkmcnt(%d)" % (2 * (issued - (k + 1))))
                D = vr(vO + 16 * t, 16)
                first = (G == 0 and aj == 0)
                e("v_mfma_f32_32x32x16_bf16 %s, %s, %s, %s" % (D, vr(slots[k % 8], 4), vr(vS + 16 * T + 4 * j, 4), "0" if first else D))
                if issued < 16:
                    rd(issued)
                    issued += 1
                for _ in range(per):
                    if fill:
                        e(fill.pop(0))
            assert not fill

    def epilogue(self, sh, h):
        e = self.e
        for t in range(4):
            b = vO + 16 * t
            for jj in range(2):
                for i in range(4 * jj, 4 * jj + 4):
                    e("v_mul_f32 v%d, v%d, v%d" % (b + 2 * i, b + 2 * i, vL0))
                    e("v_mul_f32 v%d, v%d, v%d" % (b + 2 * i + 1, b + 2 * i + 1, vL0))
                for i in range(4 * jj, 4 * jj + 4):
                    e("v_cvt_pk_bf16_f32 v%d, v%d, v%d" % (b + i, b + 2 * i, b + 2 * i + 1))
                e("buffer_store_dwordx4 %s, v%d, %s, s%d offen offset:%d %s" % (
                    vr(b + 4 * jj, 4), vQO, sr(sO, 4), sh, 32 * (2 * t + jj), self.cfg.st_mod))
                self.vm_issue(("O", h))

    def build(self):
        e = self.e
        self.prologue()
        for h, sh in ((0, sHA), (1, sHBB)):
            self.qk(h)
            if h == 0:
                e("s_barrier")
                self.load_q(sHBB, 1)
                self.dma("K", sHBB, 1)
            self.softmax_head()
            self.pv(h)
            if h == 0:
                e("s_barrier")
                self.dma("V", sHBB, 1)
            self.epilogue(sh, h)
        e("L_end:")
        e("s_endpgm")
        body = self.a.finalize()
        return body


HEADER = """; Kernarg layout for this problem (48 bytes, ptrs only, base s[0:1]):
; @launch grid=(%d,1,1) block=(%d,1,1) lds=%d
.amdgcn_target "amdgcn-amd-amdhsa--gfx950"
.text
.globl NAME_kernel
.p2align 8
.type NAME_kernel,@function
NAME_kernel:
"""

FOOTER = """
.section .rodata,"a"
.p2align 6
.amdhsa_kernel NAME_kernel
  .amdhsa_next_free_vgpr %d
  .amdhsa_next_free_sgpr %d
  .amdhsa_accum_offset %d
  .amdhsa_group_segment_fixed_size 0
  .amdhsa_kernarg_size 48
  .amdhsa_user_sgpr_count 2
  .amdhsa_user_sgpr_kernarg_segment_ptr 1
  .amdhsa_system_sgpr_workgroup_id_x 1
.end_amdhsa_kernel
"""


def write(path, body, grid, block, lds, nv=256, ns=64, acc=256):
    txt = (HEADER % (grid, block, lds)).replace("NAME", NAME)
    for l in body:
        txt += (l if l.endswith(":") else "    " + l) + "\n"
    txt += (FOOTER % (nv, ns, acc)).replace("NAME", NAME)
    open(path, "w").write(txt)


if __name__ == "__main__":
    cfg = Cfg()
    out = sys.argv[1] if len(sys.argv) > 1 else "cdna_kernels/%s.s" % NAME
    for kv in sys.argv[2:]:
        k, v = kv.split("=", 1)
        setattr(cfg, k, v)
    g = Gen(cfg)
    body = g.build()
    write(out, body, 256, 512, LDS_BYTES)
    print("instructions:", len(body), "pad states:", g.a.npad, "lds:", LDS_BYTES)
```
